```python
import torch

def _softmax(x, axis=-1):
    return torch.softmax(x, dim=axis)

def _gelu(x):
    return torch.nn.functional.gelu(x, approximate='tanh')

def _silu(x):
    return torch.nn.functional.silu(x)

def _sigmoid(x):
    return torch.sigmoid(x)

def _layernorm(x, axis=-1, eps=1e-05):
    m = x.mean(dim=axis, keepdim=True)
    v = x.var(dim=axis, keepdim=True, unbiased=False)
    return (x - m) / torch.sqrt(v + eps)

def _scatter_add(tgt, idx, src, axis=0):
    return tgt.clone().index_add_(axis, idx, src)

def _segment_sum(src, seg, n):
    out = torch.zeros((n,) + src.shape[1:], dtype=src.dtype)
    return out.index_add_(0, seg, src)

def _pad(x, pw):
    flat = tuple((v for pair in reversed(pw) for v in pair))
    return torch.nn.functional.pad(x, flat)
kernel_name = 'adaLN_cond__gqa_block_cached__glu_gated_geglu__decode'

def setup_inputs():

    _w = lambda a: (lambda t: t.to(torch.bfloat16) if t.is_floating_point() else t)(torch.as_tensor(a))

    def _A_setup():
        B, Sq, D = (1, 1, 512)
        Hq, Hkv, Sk, Dh = (32, 32, 4096, 128)
        assert Hq % Hkv == 0, (Hq, Hkv)
        return {'x': _w((lambda *s: torch.randn(*s, dtype=torch.bfloat16) * 0.05)(B, Sq, D)), 'k_cache': _w((lambda *s: torch.randn(*s, dtype=torch.bfloat16) * 3.2)(B, Hkv, Sk, Dh)), 'v_cache': _w((lambda *s: torch.randn(*s, dtype=torch.bfloat16) * 3.2)(B, Hkv, Sk, Dh)), 'wq': _w((lambda *s: torch.randn(*s, dtype=torch.bfloat16) * 3.2)(D, Hq * Dh) * D ** (-0.5)), 'wo': _w((lambda *s: torch.randn(*s, dtype=torch.bfloat16) * 3.2)(Hq * Dh, D) * (Hq * Dh) ** (-0.5))}
    _A_in = _A_setup()

    def _B_setup():
        B, S, Dm, Df = (1, 1, 512, 1376)
        return {'x': _w((lambda *s: torch.randn(*s, dtype=torch.bfloat16) * 0.05)(B, S, Dm)), 'w_gate': _w((lambda *s: torch.randn(*s, dtype=torch.bfloat16) * 3.2)(Dm, Df) * Dm ** (-0.5)), 'w_up': _w((lambda *s: torch.randn(*s, dtype=torch.bfloat16) * 3.2)(Dm, Df) * Dm ** (-0.5)), 'w_down': _w((lambda *s: torch.randn(*s, dtype=torch.bfloat16) * 3.2)(Df, Dm) * Df ** (-0.5))}
    _B_in = _B_setup()
    return {'A_x': _A_in['x'], 'A_k_cache': _A_in['k_cache'], 'A_v_cache': _A_in['v_cache'], 'A_wq': _A_in['wq'], 'A_wo': _A_in['wo'], 'B_x': _B_in['x'], 'B_w_gate': _B_in['w_gate'], 'B_w_up': _B_in['w_up'], 'B_w_down': _B_in['w_down'], 'c': _w((lambda *s: torch.randn(*s, dtype=torch.bfloat16) * 0.2)(1, 512) * 8.0), 'w_mod': _w((lambda *s: torch.randn(*s, dtype=torch.bfloat16) * 0.2)(512, 6 * 512) * 512 ** (-0.5) * 8.0)}

def reference(A_x, A_k_cache, A_v_cache, A_wq, A_wo, B_x, B_w_gate, B_w_up, B_w_down, c, w_mod):

    def _A_ref(x, k_cache, v_cache, wq, wo):
        B, Sq, D = x.shape
        Hq, Dh = (32, 128)
        Hkv = k_cache.shape[1]
        rep = Hq // Hkv
        q = (lambda x, *d: x.permute(*d))((x @ wq).reshape(B, Sq, Hq, Dh), 0, 2, 1, 3)
        k = (lambda x, n, axis: torch.repeat_interleave(x, n, dim=axis))(k_cache, rep, axis=1)
        v = (lambda x, n, axis: torch.repeat_interleave(x, n, dim=axis))(v_cache, rep, axis=1)
        scores = torch.einsum('bhqd,bhkd->bhqk', q, k) * Dh ** (-0.5)
        p = _softmax(scores, axis=-1)
        o = torch.einsum('bhqk,bhkd->bhqd', p, v)
        return (lambda x, *d: x.permute(*d))(o, 0, 2, 1, 3).reshape(B, Sq, Hq * Dh) @ wo

    def _B_ref(x, w_gate, w_up, w_down):
        g = torch.einsum('bsd,df->bsf', x, w_gate)
        u = torch.einsum('bsd,df->bsf', x, w_up)
        h = _gelu(g) * u
        return torch.einsum('bsf,fd->bsd', h, w_down)
    x = A_x
    mod = (_silu(c) @ w_mod).reshape(c.shape[0], 6, 1, -1)
    sa, ca, ga, sb, cb, gb = (mod[:, 0].clone(), mod[:, 1].clone(), mod[:, 2].clone(), mod[:, 3].clone(), mod[:, 4].clone(), mod[:, 5].clone())
    h = _layernorm(x, axis=-1) * (1 + ca) + sa
    x = x + ga * _A_ref(h, A_k_cache, A_v_cache, A_wq, A_wo)
    h = _layernorm(x, axis=-1) * (1 + cb) + sb
    x = x + gb * _B_ref(h, B_w_gate, B_w_up, B_w_down)
    return x
```

```python
import re

KN = 'adaLN_cond__gqa_block_cached__glu_gated_geglu__decode'

TRANS = ('v_exp_f32', 'v_log_f32', 'v_rcp_f32', 'v_rsq_f32', 'v_sqrt_f32', 'v_sin_f32', 'v_cos_f32')

def _regs(tok):
    tok = tok.strip()
    neg = tok.lstrip('-')
    if neg.startswith('abs(') and neg.endswith(')'): neg = neg[4:-1]
    if neg.startswith('|') and neg.endswith('|'): neg = neg[1:-1]
    m = re.fullmatch(r'([vsa])(\d+)', neg)
    if m: return {(m.group(1), int(m.group(2)))}
    m = re.fullmatch(r'([vsa])\[(\d+):(\d+)\]', neg)
    if m: return {(m.group(1), i) for i in range(int(m.group(2)), int(m.group(3)) + 1)}
    if neg in ('vcc', 'vcc_lo', 'vcc_hi'): return {('vcc', 0)}
    if neg in ('exec', 'exec_lo', 'exec_hi'): return {('exec', 0)}
    if neg == 'm0': return {('m0', 0)}
    return set()

class Ins:
    __slots__ = ('text', 'op', 'ops', 'mods', 'kind', 'wr', 'rd', 'dpp', 'passes', 'is_label', 'nstates')
    def __init__(self, text):
        self.text = text
        self.is_label = text.endswith(':')
        self.wr = set(); self.rd = set(); self.dpp = False; self.passes = 0; self.kind = 'other'; self.nstates = 1
        if self.is_label:
            self.op = ''; self.kind = 'label'; self.nstates = 0; return
        body = text.split(';')[0].strip()
        parts = body.split(None, 1)
        self.op = parts[0]
        rest = parts[1] if len(parts) > 1 else ''
        toks = []; cur = ''; depth = 0
        for ch in rest:
            if ch == '[': depth += 1
            if ch == ']': depth -= 1
            if ch == ',' and depth == 0:
                toks.append(cur.strip()); cur = ''
            else: cur += ch
        if cur.strip(): toks.append(cur.strip())
        mods = ''
        if toks:
            last = toks[-1].split(None, 1)
            if len(last) > 1:
                toks[-1] = last[0]; mods = last[1]
        self.ops = toks; self.mods = mods
        op = self.op
        if op.startswith('.'):
            self.kind = 'dir'; self.nstates = 0; return
        if op == 's_nop':
            self.kind = 'nop'; self.nstates = int(toks[0], 0) + 1; return
        base = re.sub(r'_(e32|e64|dpp|sdwa)$', '', op)
        self.dpp = ('quad_perm' in mods or 'row_' in mods or op.endswith('_dpp'))
        R = [_regs(t) for t in toks]
        if base.startswith('v_mfma'):
            self.kind = 'mfma'
            self.wr = set(R[0]); self.rd = R[1] | R[2] | (R[3] if len(R) > 3 else set())
            if '4x4x4' in base: self.passes = 2
            elif '16x16' in base: self.passes = 4
            elif '32x32' in base: self.passes = 8
            if base.endswith('_f32') and 'x4_f32' in base: self.passes = 8
        elif base.startswith('v_'):
            self.kind = 'valu'
            if base.startswith('v_cmp'):
                self.wr = set(R[0]); self.rd = set().union(*R[1:])
            elif base.startswith('v_permlane') and 'swap' in base:
                self.kind = 'permlane'
                self.wr = R[0] | R[1]; self.rd = R[0] | R[1]
            elif base in ('v_readlane_b32', 'v_readfirstlane_b32'):
                self.kind = 'readlane'
                self.wr = set(R[0]); self.rd = set().union(*R[1:])
            elif base == 'v_writelane_b32':
                self.wr = set(R[0]); self.rd = set().union(*R)
            elif base in ('v_add_co_u32', 'v_sub_co_u32', 'v_subrev_co_u32'):
                self.wr = R[0] | R[1]; self.rd = set().union(*R[2:])
            elif base in ('v_addc_co_u32', 'v_subb_co_u32'):
                self.wr = R[0] | R[1]; self.rd = set().union(*R[2:])
            else:
                self.wr = set(R[0]); self.rd = set().union(*R[1:]) if len(R) > 1 else set()
                if base in ('v_fmac_f32', 'v_dot2c_f32_bf16', 'v_mac_f32', 'v_fmamk_f32') or self.dpp:
                    self.rd |= R[0]
                if base == 'v_cndmask_b32' and len(R) == 3: self.rd |= {('vcc', 0)}
            if base in TRANS: self.kind = 'trans'
            if base.startswith('v_dot'): self.kind = 'dot'
        elif base.startswith(('buffer_', 'global_', 'flat_')):
            self.kind = 'vmem'
            is_store = 'store' in base or ('atomic' in base)
            lds = re.search(r'\blds\b', mods) is not None or 'load_lds' in base
            if base.startswith('buffer_inv') or base.startswith('buffer_wbl2'):
                pass
            elif is_store or lds:
                self.rd = set().union(*R)
                if lds: self.rd |= {('m0', 0)}
            else:
                self.wr = set(R[0]); self.rd = set().union(*R[1:])
        elif base.startswith('ds_'):
            self.kind = 'ds'
            if 'read' in base or 'bpermute' in base or 'swizzle' in base or 'permute' in base:
                self.wr = set(R[0]); self.rd = set().union(*R[1:])
            else:
                self.rd = set().union(*R)
        elif base.startswith('s_'):
            self.kind = 'salu'
            if base.startswith(('s_cmp', 's_cbranch', 's_branch', 's_waitcnt', 's_barrier', 's_sleep', 's_setprio', 's_endpgm', 's_bitcmp')):
                self.rd = set().union(*R) if R else set()
            else:
                self.wr = set(R[0]) if R else set(); self.rd = set().union(*R[1:]) if len(R) > 1 else set()
                if 'saveexec' in base: self.wr |= {('exec', 0)}

    def is_valu(self): return self.kind in ('valu', 'trans', 'dot', 'permlane', 'readlane')

def need_states(p, c):
    n = 0
    pv = {r for r in p.wr if r[0] in 'va'}
    ps = {r for r in p.wr if r[0] in ('s', 'vcc')}
    if p.is_valu():
        if pv:
            if c.is_valu() and c.dpp and (pv & c.rd): n = max(n, 2)
            if c.kind == 'readlane' and (pv & c.rd): n = max(n, 1)
            if c.kind == 'permlane' and (pv & c.rd): n = max(n, 2)
            if c.kind == 'mfma' and (pv & c.rd): n = max(n, 2)
            if p.kind == 'trans' and c.is_valu() and c.kind != 'trans' and (pv & (c.rd | c.wr)): n = max(n, 1)
            if p.kind == 'trans' and c.kind == 'trans' and (pv & c.rd): n = max(n, 1)
            if p.kind == 'dot':
                if c.kind == 'dot' and c.op == p.op:
                    ab = set()
                    for t in c.ops[1:3]: ab |= _regs(t)
                    if pv & ab: n = max(n, 3)
                elif (c.is_valu() or c.kind in ('mfma', 'vmem', 'ds')) and (pv & (c.rd | c.wr)): n = max(n, 3)
        if ps:
            if c.is_valu() and (ps & c.rd):
                n = max(n, 2)
                if c.op.startswith(('v_readlane', 'v_writelane')): n = max(n, 4)
            if c.kind == 'vmem' and (ps & c.rd): n = max(n, 5)
    if p.kind == 'mfma':
        tab = {2: (2, 4, 5), 4: (0, 6, 8), 8: (0, 10, 12), 16: (0, 18, 20)}[p.passes]
        if c.kind == 'mfma':
            cs = _regs(c.ops[3]) if len(c.ops) > 3 else set()
            ab = _regs(c.ops[1]) | _regs(c.ops[2])
            if pv & ab: n = max(n, tab[2])
            if pv & cs:
                n = max(n, tab[0] if (cs == pv and c.passes == p.passes) else tab[1])
            if (pv & c.wr) and not (pv & cs): n = max(n, tab[1])
        elif c.is_valu() or c.kind in ('vmem', 'ds'):
            if pv & (c.rd | c.wr): n = max(n, tab[2])
        cs = _regs(p.ops[3]) if len(p.ops) > 3 else set()
        if c.is_valu() and (cs & c.wr): n = max(n, {2: 1, 4: 3, 8: 7, 16: 15}[p.passes])
    if p.kind == 'vmem' and 'store' in p.op and ('x4' in p.op or 'x3' in p.op):
        data = _regs(p.ops[0]) if p.op.startswith('buffer_') else _regs(p.ops[1])
        if (c.is_valu() or c.kind == 'mfma') and (data & c.wr): n = max(n, 2)
        elif c.kind in ('vmem', 'ds') and (data & c.wr): n = max(n, 1)
    if p.kind == 'salu' and ('m0', 0) in p.wr and c.kind == 'vmem' and ('m0', 0) in c.rd: n = max(n, 1)
    if p.is_valu() and ('exec', 0) in p.wr: pass
    return n

class Asm:
    def __init__(self):
        self.ins = []
        self.uid = 0
    def __call__(self, s=''):
        for l in s.split('\n'):
            l = l.strip()
            if not l or l.startswith(';'): continue
            self.ins.append(Ins(l))
    def label(self, base):
        self.uid += 1
        return f'L_{base}_{self.uid}'
    def finalize(self, window=24):
        out = []
        for c in self.ins:
            if c.kind in ('label', 'dir'):
                out.append(c); continue
            need = 0; dist = 0
            for p in reversed(out):
                if p.kind in ('label', 'dir'): continue
                if dist >= window: break
                if p.op in ('s_branch', 's_endpgm'): break
                k = need_states(p, c)
                if k > dist: need = max(need, k - dist)
                dist += p.nstates
            while need > 0:
                k = min(need, 16)
                out.append(Ins(f's_nop {k-1}'))
                need -= k
            out.append(c)
        self.ins = out
    def text(self):
        return '\n'.join((i.text if i.is_label else '    ' + i.text) for i in self.ins)
    def nbytes_estimate(self):
        return len(self.ins) * 6

def header():
    ref = open('cdna_kernels/' + KN + '.s.ref').read()
    return ref.split('; Override launch geometry')[0]

def wrap(body, grid, block, lds, nvgpr, nsgpr=96, accum=None):
    K = KN + '_kernel'
    if accum is None: accum = (nvgpr + 3) // 4 * 4
    return header() + f'''; Override launch geometry by editing the next line (default: block=256,
; grid=ceil(out_elems/256), lds=0). Harness parses it; keep it on one line.
; @launch grid=({grid},1,1) block=({block},1,1) lds={lds}
.amdgcn_target "amdgcn-amd-amdhsa--gfx950"
.text
.globl {K}
.p2align 8
.type {K},@function
{K}:
{body}
.section .rodata,"a"
.p2align 6
.amdhsa_kernel {K}
  .amdhsa_next_free_vgpr {nvgpr}
  .amdhsa_next_free_sgpr {nsgpr}
  .amdhsa_accum_offset {accum}
  .amdhsa_group_segment_fixed_size 0
  .amdhsa_kernarg_size 112
  .amdhsa_user_sgpr_count 2
  .amdhsa_user_sgpr_kernarg_segment_ptr 1
  .amdhsa_system_sgpr_workgroup_id_x 1
.end_amdhsa_kernel
'''
```

```python
import sys
from asmlib import *

STAMPS = '--stamps' in sys.argv
OUTF = [a for a in sys.argv[1:] if not a.startswith('--')]
OUTF = OUTF[0] if OUTF else 'k3.s'
DRY = '--nodry' not in sys.argv
CNTS = '--cnts' in sys.argv
DIAG = '--diag' in sys.argv
def opt(name, default):
    for x in sys.argv[1:]:
        if x.startswith('--' + name + '='): return int(x.split('=')[1])
    return default
WK = opt('wk', 5)
WV = opt('wv', 5)
LOCAL = opt('local', 1)
PSLEEP = opt('psleep', 2)
VIAT = opt('viat', 32)
DNLATE = opt('dnlate', 0)
WQLATE = opt('wqlate', 1)

F_Q, F_P, F_O, F_VI, F_WO, F_GU, F_DN, F_BC, F_V1, F_V2, F_V3, F_KI = 0, 16, 32, 48, 64, 68, 72, 76, 80, 84, 88, 96
L_Q = 0x100; L_ML = 0x200; L_VECA = 0x300; L_VECH = 0x400; L_VEC1 = 0x500; L_VEC2 = 0x600; L_VEC3 = 0x680; L_VECBC = 0x6C0
L_P = 0x800; L_O = 0x1000
T_MOD = 0x2000; T_WQ = 0x6000; T_WO = 0xA000; T_GU = 0xE000; T_D = 0x12000
LDS_SIZE = 0x14000
W_XT = 0x2000
W_XB = 0x2800
W_MODP = 0x4000
W_YP = 0x20000
W_ZP = 0x30000
W_MB = 0x100000; MBP = 4096
MB_QP, MB_OP, MB_GP, MB_ST, MB_ML, MB_BC = 0, 512, 1024, 1792, 1808, 2048
DL = 0x200000
WS_SIZE = 0x400000
STAMP_OFF = 0x8000000

LOG2E = 0x3fb8aa3b
SCALE = 0x3db504f3
TAG = 's6'
BE = 's[56:57]'
WS = 's[36:39]'
POLL_MAX = 0x40000
SPIN_MAX = 0x200000
Q4 = 's[94:95]'

a = Asm()

def stamp(idx):
    if not STAMPS: return
    a('s_memrealtime s[70:71]')
    a('s_waitcnt lgkmcnt(0)')
    a(f'v_writelane_b32 v165, s70, {idx}')

def stamp_flush():
    if not STAMPS: return
    a('s_mul_i32 s72, s2, 10')
    a('s_add_u32 s72, s72, s3')
    a('s_lshl_b32 s72, s72, 7')
    a(f's_add_u32 s72, s72, {STAMP_OFF}')
    a('v_lshl_add_u32 v164, v0, 2, s72')
    a('s_mov_b32 exec_lo, -1')
    a('s_mov_b32 exec_hi, 0')
    a('global_store_dword v164, v165, s[34:35]')
    a('s_waitcnt vmcnt(0)')

def endpgm():
    stamp_flush()
    a('s_endpgm')

def rne(v):
    a(f'v_cvt_pk_bf16_f32 {v}, {v}, {v}')
    a(f'v_and_b32 {v}, 0xffff0000, {v}')

def rne_many(vs):
    for v in vs: a(f'v_cvt_pk_bf16_f32 {v}, {v}, {v}')
    for v in vs: a(f'v_and_b32 {v}, 0xffff0000, {v}')

def dpp(op, v, mod, src=None, rm='0xf', bm='0xf'):
    src = src or v
    a(f'{op}_dpp {v}, {src}, {src} {mod} row_mask:{rm} bank_mask:{bm}')

def xlane_many(op, vs, tmps, steps):
    for s in steps:
        if s in ('r16', 'r32'):
            sw = 'v_permlane16_swap_b32' if s == 'r16' else 'v_permlane32_swap_b32'
            for v, t in zip(vs, tmps): a(f'v_mov_b32 {t}, {v}')
            for v, t in zip(vs, tmps): a(f'{sw} {v}, {t}')
            for v, t in zip(vs, tmps): a(f'{op} {v}, {v}, {t}')
        else:
            mod = {'x1': 'quad_perm:[1,0,3,2]', 'x2': 'quad_perm:[2,3,0,1]', 'hm': 'row_half_mirror', 'm': 'row_mirror',
                   'ror4': 'row_ror:4', 'ror8': 'row_ror:8'}[s]
            for v in vs: dpp(op, v, mod)
def xlane(op, v, tmp, steps): xlane_many(op, [v], [tmp], steps)
FULL = ['x1', 'x2', 'hm', 'm', 'r16', 'r32']

def srd(n, lo, hi, size):
    a(f's_mov_b32 s{n}, {lo}')
    a(f's_and_b32 s{n+1}, {hi}, 0xffff')
    a(f's_mov_b32 s{n+2}, {size}')
    a(f's_mov_b32 s{n+3}, 0x20000')

def tagcheck(regs, vtag, acc):
    a(f'v_xor_b32 {acc}, {regs[0]}, {vtag}')
    for r in regs[1:]:
        a(f'v_bitop3_b32 {acc}, {acc}, {r}, {vtag} bitop3:0xf6')
    a(f'v_cmp_ne_u32 vcc, 0, {acc}')

def sentcheck(regs, acc, acc2):
    regs = list(regs)
    def chain(ac, rs):
        if len(rs) == 1: a(f'v_mov_b32 {ac}, {rs[0]}'); return
        if len(rs) == 2: a(f'v_max_u32 {ac}, {rs[0]}, {rs[1]}'); return
        a(f'v_max3_u32 {ac}, {rs[0]}, {rs[1]}, {rs[2]}')
        i = 3
        while i < len(rs):
            if i + 1 < len(rs): a(f'v_max3_u32 {ac}, {ac}, {rs[i]}, {rs[i+1]}'); i += 2
            else: a(f'v_max_u32 {ac}, {ac}, {rs[i]}'); i += 1
    if len(regs) >= 8:
        h = len(regs) // 2
        save = a.ins;
        a.ins = []; chain(acc, regs[:h]); c1 = a.ins
        a.ins = []; chain(acc2, regs[h:]); c2 = a.ins
        a.ins = save
        for i in range(max(len(c1), len(c2))):
            if i < len(c1): a.ins.append(c1[i])
            if i < len(c2): a.ins.append(c2[i])
        a(f'v_max_u32 {acc}, {acc}, {acc2}')
    else:
        chain(acc, regs)
    a(f'v_cmp_eq_u32 vcc, -1, {acc}')

def poll(issue, check, cnt='s68', sleep=0, dry_skip=False, cidx=None, scc=False):
    L = a.label('poll'); X = a.label('pollx')
    a(f's_mov_b32 {cnt}, {POLL_MAX}')
    a(f'{L}:')
    issue()
    if dry_skip:
        K = a.label('nw')
        a(f's_cbranch_execz {K}')
        a('s_waitcnt vmcnt(0)')
        a(f'{K}:')
    else:
        a('s_waitcnt vmcnt(0)')
    check()
    a(f's_cbranch_scc0 {X}' if scc else f's_cbranch_vccz {X}')
    if sleep: a(f's_sleep {sleep}')
    a(f's_sub_u32 {cnt}, {cnt}, 1')
    a(f's_cbranch_scc0 {L}')
    a(f'{X}:')
    if CNTS and cidx is not None:
        a(f's_sub_u32 s73, {POLL_MAX}, {cnt}')
        a(f'v_writelane_b32 v165, s73, {16 + cidx}')
def SC(regs): return lambda: sentcheck(regs, 'v25', 'v27')
def rng(a0, n): return [f'v{a0+i}' for i in range(n)]

def spin(issue, flagregs, vtag, acc, sleep=0, cnt='s68'):
    L = a.label('spin'); X = a.label('spinx')
    a(f's_mov_b32 {cnt}, {SPIN_MAX}')
    a(f'{L}:')
    issue()
    a('s_waitcnt lgkmcnt(0)')
    if len(flagregs) == 1:
        a(f'v_cmp_ne_u32 vcc, {flagregs[0]}, {vtag}')
    else:
        a(f'v_xor_b32 {acc}, {flagregs[0]}, {vtag}')
        for r in flagregs[1:]:
            a(f'v_bitop3_b32 {acc}, {acc}, {r}, {vtag} bitop3:0xf6')
        a(f'v_cmp_ne_u32 vcc, 0, {acc}')
    a(f's_cbranch_vccz {X}')
    if sleep: a(f's_sleep {sleep}')
    a(f's_sub_u32 {cnt}, {cnt}, 1')
    a(f's_cbranch_scc0 {L}')
    a(f'{X}:')

def post_flag(off, vtag='v2', vzero='v3'):
    a(f'ds_write_b32 {vzero}, {vtag} offset:{off}')

def make_tag():
    a('s_waitcnt lgkmcnt(0)')
    a(f's_mul_i32 {TAG}, {TAG}, 0x9E3779B1')
    a(f's_add_u32 {TAG}, {TAG}, 0x7F4A7C15')
    a(f's_or_b32 {TAG}, {TAG}, 1')
    a(f'v_mov_b32 v2, {TAG}')
    a('v_mov_b32 v3, 0')

def tr_addr(vdst, vtmp, pitch_shift, base):
    a(f'v_lshrrev_b32 {vdst}, 4, v0')
    a(f'v_bfe_u32 {vtmp}, v0, 2, 2')
    a(f'v_lshl_add_u32 {vdst}, {vdst}, 3, {vtmp}')
    a(f'v_lshlrev_b32 {vdst}, {pitch_shift}, {vdst}')
    a(f'v_and_b32 {vtmp}, 3, v0')
    a(f'v_lshl_add_u32 {vdst}, {vtmp}, 3, {vdst}')
    a(f'v_add_u32 {vdst}, {base}, {vdst}')

def tr_read(breg, vaddr, ks, nb, pitch, extra=0):
    for hlf in range(2):
        r = breg + 2*hlf
        a(f'ds_read_b64_tr_b16 v[{r}:{r+1}], {vaddr} offset:{(32*ks + 4*hlf)*pitch + nb*32 + extra}')

def mfma(acc, A, B, first):
    c = '0' if first else f'v[{acc}:{acc+3}]'
    a(f'v_mfma_f32_16x16x32_bf16 v[{acc}:{acc+3}], v[{A}:{A+3}], v[{B}:{B+3}], {c}')

def sel_rows(dst, regs):
    for q, r in enumerate(regs):
        a(f'v_mov_b32_dpp {dst}, v{r} quad_perm:[0,1,2,3] row_mask:{hex(1<<q)} bank_mask:0xf')

def sanitize(regs):
    for r in regs: a(f'v_min_u32 {r}, s97, {r}')

def store2(data, vaddr, width, off=0, local=True):
    o = f' offset:{off}' if off else ''
    if LOCAL and local:
        a(f'buffer_store_{width} {data}, {vaddr}, {WS}, s96 offen{o}')
    a(f'buffer_store_{width} {data}, {vaddr}, {WS}, 0 offen{o} sc1')

def sum4(base, n):
    if n == 4:
        for e in range(4): a(f'v_add_f32 v{base+e}, v{base+e}, v{base+4+e}')
        for e in range(4): a(f'v_add_f32 v{base+8+e}, v{base+8+e}, v{base+12+e}')
        for e in range(4): a(f'v_add_f32 v{base+e}, v{base+e}, v{base+8+e}')
    else:
        for u in range(1, n):
            for e in range(4): a(f'v_add_f32 v{base+e}, v{base+e}, v{base+4*u+e}')

a('''
s_cmp_ge_u32 s2, 256
s_cbranch_scc1 L_end
''')
if STAMPS: a('s_memrealtime s[92:93]')
a('''
s_load_dwordx16 s[8:23], s[0:1], 0
s_load_dwordx8 s[24:31], s[0:1], 64
s_load_dwordx4 s[32:35], s[0:1], 96
v_lshrrev_b32 v1, 6, v0
v_and_b32 v0, 63, v0
v_readfirstlane_b32 s3, v1
s_and_b32 s7, s2, 7
s_lshr_b32 s88, s2, 3
s_lshr_b32 s5, s88, 3
s_lshl_b32 s4, s7, 2
s_add_u32 s4, s4, s5
s_and_b32 s5, s88, 7
s_min_u32 s90, s7, 3
s_mul_i32 s89, s7, 5
s_add_u32 s90, s90, s89
s_cmp_lt_u32 s7, 3
s_cselect_b32 s89, 6, 5
s_mov_b64 s[56:57], -1
s_mov_b32 s94, 0x10001
s_mov_b32 s95, 0x10001
s_lshl_b32 s75, s7, 5
s_add_u32 s75, s75, s88
s_lshl_b32 s74, s75, 12
v_lshlrev_b32 v1, 4, v0
s_waitcnt lgkmcnt(0)
s_load_dword s6, s[34:35], 0
''')
a(f's_add_u32 s74, s74, {W_MB}')
a(f's_mov_b32 s96, {DL}')
a('s_mov_b32 s97, 0xfffffffe')
srd(36, 's34', 's35', WS_SIZE)
if STAMPS:
    a('v_mov_b32 v165, 0')
    a('v_writelane_b32 v165, s92, 15')
a('''
s_cmp_lt_u32 s3, 2
s_cbranch_scc1 L_helpers
''')
D0 = 8
a('''
s_sub_u32 s58, s3, 2
s_and_b32 s59, s58, 3
s_cmp_ge_u32 s3, 6
s_cselect_b32 s40, s12, s10
s_cselect_b32 s41, s13, s11
s_lshl_b32 s60, s4, 20
s_lshl_b32 s61, s5, 17
s_add_u32 s60, s60, s61
s_lshl_b32 s61, s59, 15
s_add_u32 s60, s60, s61
s_add_u32 s40, s40, s60
s_addc_u32 s41, s41, 0
s_and_b32 s41, s41, 0xffff
s_mov_b32 s42, 32768
s_mov_b32 s43, 0x20000
''')
def issue_loads(W, hook=None, bar_at=None):
    a('s_mov_b32 s62, 0')
    for t in range(32):
        if bar_at is not None and t == bar_at: a('s_barrier')
        if hook and t == VIAT: hook()
        if t % 4 == 0 and t > 0: a(f's_movk_i32 s62, {(t//4)*4096}')
        if W and t >= W: a(f's_waitcnt vmcnt({W-1})')
        a(f'buffer_load_dwordx4 v[{D0+4*t}:{D0+4*t+3}], v1, s[40:43], s62 offen offset:{(t%4)*1024} nt')
a('s_cmp_ge_u32 s3, 6')
a('s_cbranch_scc1 L_vwave0')
issue_loads(WK, bar_at=(WK if WK else 8))
stamp(0)
make_tag()
a('s_lshl_b32 s63, s59, 2')
a('v_mov_b32 v4, s63')
a(f'ds_write_b32 v4, v2 offset:{F_KI}')

a('v_and_b32 v136, 15, v0')
a('v_lshlrev_b32 v136, 4, v136')
def k_issue_q():
    a(f'ds_read_b32 v137, v3 offset:{F_Q}')
    a(f'ds_read_b128 v[4:7], v136 offset:{L_Q}')
spin(k_issue_q, ['v137'], 'v2', 'v138', sleep=2)
stamp(1)
S = lambda t: f'v{D0+4*t}'
for b in range(2):
    for grp in range(4):
        t0 = 16*b + 4*grp
        a(f's_waitcnt vmcnt({31 - (t0+3)})')
        for j in range(4):
            for t in range(t0, t0+4):
                if j == 0: a(f'v_dot2_f32_bf16 {S(t)}, {S(t)}, v4, 0')
                else: a(f'v_dot2_f32_bf16 {S(t)}, v{D0+4*t+j}, v{4+j}, {S(t)}')
    o = 16*b
    for t in range(8): dpp('v_add_f32', S(o+t), 'row_ror:8', bm='0x3')
    for t in range(8): dpp('v_add_f32', S(o+t), 'row_ror:8', src=S(o+t+8), bm='0xc')
    for t in range(4): dpp('v_add_f32', S(o+t), 'row_half_mirror', bm='0x5')
    for t in range(4): dpp('v_add_f32', S(o+t), 'row_half_mirror', src=S(o+t+4), bm='0xa')
    for t in range(4): dpp('v_add_f32', S(o+t), 'quad_perm:[1,0,3,2]')
    for t in range(4): dpp('v_add_f32', S(o+t), 'quad_perm:[2,3,0,1]')
R = [S(16*b + r) for b in range(2) for r in range(4)]
a(f's_mov_b32 s63, {SCALE}')
rne_many(R)
for r in R: a(f'v_mul_f32 {r}, s63, {r}')
rne_many(R)
a(f'v_max3_f32 v140, {R[0]}, {R[1]}, {R[2]}')
a(f'v_max3_f32 v141, {R[3]}, {R[4]}, {R[5]}')
a(f'v_max3_f32 v140, v140, {R[6]}, {R[7]}')
a(f'v_max_f32 v140, v140, v141')
xlane('v_max_f32', 'v140', 'v141', ['ror4', 'ror8', 'r16', 'r32'])
a(f's_mov_b32 s63, {LOG2E}')
for r in R: a(f'v_sub_f32 {r}, {r}, v140')
for r in R: a(f'v_mul_f32 {r}, s63, {r}')
for r in R: a(f'v_exp_f32 {r}, {r}')
a(f'v_add_f32 v142, {R[0]}, {R[1]}')
a(f'v_add_f32 v143, {R[2]}, {R[3]}')
a(f'v_add_f32 v144, {R[4]}, {R[5]}')
a(f'v_add_f32 v145, {R[6]}, {R[7]}')
a('v_add_f32 v142, v142, v143')
a('v_add_f32 v144, v144, v145')
a('v_add_f32 v142, v142, v144')
xlane('v_add_f32', 'v142', 'v143', ['ror4', 'ror8', 'r16', 'r32'])
for r in R: a(f'v_cvt_pk_bf16_f32 {r}, {r}, {r}')
a('v_lshrrev_b32 v144, 4, v0')
a('v_lshlrev_b32 v144, 7, v144')
a('v_bfe_u32 v145, v0, 2, 2')
a('v_lshl_add_u32 v144, v145, 4, v144')
a('s_lshl_b32 s63, s59, 9')
a('v_add_u32 v144, s63, v144')
for b in range(2):
    for r in range(4):
        a(f'ds_write_b32 v144, {R[4*b+r]} offset:{L_P + 64*b + 4*r}')
a('s_lshl_b32 s63, s59, 2')
a('v_mov_b32 v145, s63')
a(f'ds_write_b32 v145, v140 offset:{L_ML}')
a(f'ds_write_b32 v145, v142 offset:{L_ML + 16}')
a(f'ds_write_b32 v145, v2 offset:{F_P}')
stamp(2)
tr_addr('v136', 'v149', 7, T_WO)
a('s_lshl_b32 s63, s59, 5')
a('v_add_u32 v136, s63, v136')
tr_addr('v137', 'v149', 9, T_GU)
a('s_mul_i32 s63, s59, 96')
a('v_add_u32 v137, s63, v137')
tr_addr('v148', 'v149', 8, T_D)
a('s_lshl_b32 s63, s59, 6')
a('v_add_u32 v148, s63, v148')
a('v_lshrrev_b32 v138, 4, v0')
a('v_lshlrev_b32 v138, 4, v138')
a('v_and_b32 v149, 1, v0')
a('v_lshl_add_u32 v150, v149, 6, v138')
a('s_lshl_b32 s63, s4, 11')
a('s_lshl_b32 s64, s5, 8')
a('s_add_u32 s63, s63, s64')
a('s_lshl_b32 s64, s59, 6')
a('s_add_u32 s63, s63, s64')
a(f's_add_u32 s63, s63, {W_YP}')
a('v_add_u32 v139, s63, v138')
a('s_mul_i32 s63, s59, 192')
a('s_add_u32 s63, s63, s74')
a(f's_add_u32 s64, s63, {MB_GP}')
a('v_add_u32 v146, s64, v138')
a(f's_add_u32 s64, s63, {MB_BC}')
a(f'v_mul_u32_u24 v151, 768, v149')
a('v_add_u32 v151, v151, v138')
a('v_add_u32 v151, s64, v151')
a('s_lshr_b32 s63, s88, 2')
a('s_add_u32 s63, s63, s90')
a('s_lshl_b32 s63, s63, 11')
a('s_and_b32 s64, s88, 3')
a('s_lshl_b32 s64, s64, 9')
a('s_add_u32 s63, s63, s64')
a('s_lshl_b32 s64, s59, 7')
a('s_add_u32 s63, s63, s64')
a(f's_add_u32 s63, s63, {W_ZP}')
a('v_add_u32 v147, s63, v138')
a('s_lshl_b32 s65, s89, 2')
a('s_mov_b32 s66, 0x30003')
a('s_mov_b32 s67, 0x30003')
spin(lambda: a(f'ds_read_b32 v84, v3 offset:{F_GU}'), ['v84'], 'v2', 'v85', sleep=2)
for k in range(3): tr_read(24 + 4*k, 'v137', 0, k, 512)
def k_issue_bc():
    a(f'ds_read_b32 v84, v3 offset:{F_BC}')
    a(f'ds_read_b128 v[48:51], v150 offset:{L_VECBC}')
spin(k_issue_bc, ['v84'], 'v2', 'v85', sleep=2)
for k in range(3): mfma(64 + 4*k, 24 + 4*k, 48, True)
sanitize(rng(64, 12))
a('s_mov_b64 exec, s[66:67]')
for k in range(3): store2(f'v[{64+4*k}:{67+4*k}]', 'v151', 'dwordx4', off=64*k)
a('s_mov_b64 exec, -1')
stamp(7)
if DRY:
    a('s_mov_b64 s[56:57], 0')
    a('s_mov_b64 exec, 0')
    a('s_branch L_ktail')
    a('L_ktail_ret:')
    a('s_mov_b64 s[56:57], -1')
    a('s_mov_b64 exec, -1')
a('L_ktail:')
spin(lambda: a(f'ds_read_b32 v84, v3 offset:{F_WO}'), ['v84'], 'v2', 'v85', sleep=1)
for ks in range(4): tr_read(8 + 4*ks, 'v136', ks, 0, 128)
a('s_waitcnt lgkmcnt(0)')
stamp(3)
def k_issue_v1():
    a(f'ds_read_b32 v84, v3 offset:{F_V1}')
    for ks in range(4): a(f'ds_read_b128 v[{48+4*ks}:{51+4*ks}], v138 offset:{L_VEC1 + 64*ks}')
spin(k_issue_v1, ['v84'], 'v2', 'v85')
for ks in range(4): mfma(64, 8 + 4*ks, 48 + 4*ks, ks == 0)
sanitize(rng(64, 4))
a(f's_and_b64 exec, {BE}, {Q4}')
a(f'buffer_store_dwordx4 v[64:67], v139, {WS}, 0 offen sc1')
a(f's_mov_b64 exec, {BE}')
stamp(4)
def k_issue_v2():
    a(f'ds_read_b32 v84, v3 offset:{F_V2}')
    a(f'ds_read_b128 v[48:51], v138 offset:{L_VEC2}')
    a(f'ds_read_b128 v[52:55], v138 offset:{L_VEC2 + 64}')
spin(k_issue_v2, ['v84'], 'v2', 'v85')
for k in range(3): mfma(64 + 4*k, 24 + 4*k, 48, True)
for k in range(3): mfma(64 + 4*k, 24 + 4*k, 52, False)
sanitize(rng(64, 12))
a(f's_and_b64 exec, {BE}, {Q4}')
if LOCAL:
    for k in range(3): a(f'buffer_store_dwordx4 v[{64+4*k}:{67+4*k}], v146, {WS}, s96 offen offset:{64*k}')
for k in range(3): a(f'buffer_store_dwordx4 v[{64+4*k}:{67+4*k}], v146, {WS}, 0 offen offset:{64*k} sc1')
a(f's_mov_b64 exec, {BE}')
stamp(5)
a('s_cmp_ge_u32 s88, s65')
a('s_cbranch_scc1 L_ktail_end')
spin(lambda: a(f'ds_read_b32 v84, v3 offset:{F_DN}'), ['v84'], 'v2', 'v85')
for nbb in range(2): tr_read(40 + 4*nbb, 'v148', 0, nbb, 256)
def k_issue_v3():
    a(f'ds_read_b32 v84, v3 offset:{F_V3}')
    a(f'ds_read_b128 v[48:51], v138 offset:{L_VEC3}')
spin(k_issue_v3, ['v84'], 'v2', 'v85')
for i in range(2): mfma(80 + 4*i, 40 + 4*i, 48, True)
sanitize(rng(80, 8))
a(f's_and_b64 exec, {BE}, {Q4}')
for i in range(2): a(f'buffer_store_dwordx4 v[{80+4*i}:{83+4*i}], v147, {WS}, 0 offen offset:{64*i} sc1')
a(f's_mov_b64 exec, {BE}')
stamp(6)
a('L_ktail_end:')
if DRY:
    a('s_cbranch_execz L_ktail_ret')
endpgm()

a('L_vwave0:')
a('s_barrier')
a('s_cmp_lg_u32 s59, 0')
a('s_cbranch_scc1 L_v_noinit')
a('v_mov_b32 v4, -1\nv_mov_b32 v5, -1\nv_mov_b32 v6, -1\nv_mov_b32 v7, -1')
a('v_add_u32 v136, s74, v1')
if LOCAL:
    for u in range(4): a(f'buffer_store_dwordx4 v[4:7], v136, {WS}, s96 offen offset:{1024*u}')
make_tag()
a('s_getreg_b32 s91, hwreg(HW_REG_XCC_ID)')
a('s_lshl_b32 s58, s75, 3')
a(f's_add_u32 s58, s58, {W_XT}')
a('v_mov_b32 v138, s58\nv_mov_b32 v140, s91\nv_mov_b32 v141, v2')
a('s_waitcnt vmcnt(0)')
a('s_mov_b64 exec, 1')
a(f'buffer_store_dwordx2 v[140:141], v138, {WS}, 0 offen sc1')
a('s_mov_b64 exec, -1')
stamp(5)
for u in range(4): a(f'buffer_store_dwordx4 v[4:7], v136, {WS}, 0 offen offset:{1024*u} sc1')
a('s_lshl_b32 s63, s4, 11')
a('s_lshl_b32 s64, s5, 8')
a('s_add_u32 s63, s63, s64')
a(f's_add_u32 s63, s63, {W_YP}')
a('v_add_u32 v137, s63, v1')
a('s_mov_b64 exec, 0xffff')
a(f'buffer_store_dwordx4 v[4:7], v137, {WS}, 0 offen sc1')
a('s_lshl_b32 s65, s89, 2')
a('s_cmp_ge_u32 s88, s65')
a('s_cbranch_scc1 L_v_nozp')
a('s_lshr_b32 s63, s88, 2')
a('s_add_u32 s63, s63, s90')
a('s_lshl_b32 s63, s63, 11')
a('s_and_b32 s64, s88, 3')
a('s_lshl_b32 s64, s64, 9')
a('s_add_u32 s63, s63, s64')
a(f's_add_u32 s63, s63, {W_ZP}')
a('s_mov_b32 exec_lo, -1')
a('v_add_u32 v137, s63, v1')
a(f'buffer_store_dwordx4 v[4:7], v137, {WS}, 0 offen sc1')
a('L_v_nozp:')
a('s_mov_b64 exec, 1')
a('s_waitcnt vmcnt(0)')
a(f'buffer_store_dwordx2 v[140:141], v138, {WS}, 0 offen offset:{W_XB - W_XT} sc1')
a('s_mov_b64 exec, -1')
a('s_waitcnt vmcnt(0)')
stamp(4)
a('s_branch L_v_go')
a('L_v_noinit:')
make_tag()
a('L_v_go:')
spin(lambda: a(f'ds_read_b128 v[4:7], v3 offset:{F_KI}'), ['v4', 'v5', 'v6', 'v7'], 'v2', 'v136', sleep=2)
a('s_lshl_b32 s63, s59, 2')
a('v_mov_b32 v160, s63')
issue_loads(WV, hook=lambda: a(f'ds_write_b32 v160, v2 offset:{F_VI}'))
stamp(0)
if VIAT >= 32: a(f'ds_write_b32 v160, v2 offset:{F_VI}')
a('v_and_b32 v161, 15, v0')
a('v_lshrrev_b32 v162, 1, v161')
a('v_and_b32 v161, 1, v161')
a('v_cmp_eq_u32 vcc, 1, v161')
a('v_mov_b32 v163, 0xffff')
a('v_mov_b32 v161, 0xffff0000')
a('v_cndmask_b32 v163, v163, v161, vcc')
for j in range(4):
    a(f'v_cmp_eq_u32 vcc, {j}, v162')
    a(f'v_cndmask_b32 v{136+j}, 0, v163, vcc')
a('v_lshrrev_b32 v161, 4, v0')
a('v_lshlrev_b32 v161, 7, v161')
a('s_lshl_b32 s63, s59, 9')
a('v_add_u32 v161, s63, v161')
def v_issue_p():
    a(f'ds_read_b32 v162, v160 offset:{F_P}')
    a(f'ds_read_b128 v[148:151], v161 offset:{L_P}')
spin(v_issue_p, ['v162'], 'v2', 'v163', sleep=2)
stamp(1)
for c in range(8):
    cur = 148 + 4*(c % 2); nxt = 148 + 4*((c+1) % 2)
    if c + 1 < 8:
        a(f'ds_read_b128 v[{nxt}:{nxt+3}], v161 offset:{L_P + 16*(c+1)}')
    for k in range(4):
        t = 4*c + k
        A = 140 + 4*(t % 2)
        for j in range(4):
            a(f'v_and_b32 v{A+j}, v{cur+k}, v{136+j}')
        a(f's_waitcnt vmcnt({31 - t})')
        mfma(156, A, D0 + 4*t, t == 0)
    if c + 1 < 8:
        a('s_waitcnt lgkmcnt(0)')
a('v_and_b32 v162, 15, v0')
a('v_lshlrev_b32 v162, 5, v162')
a('v_lshrrev_b32 v163, 4, v0')
a('v_lshl_add_u32 v162, v163, 4, v162')
a('s_lshl_b32 s63, s59, 9')
a('v_add_u32 v162, s63, v162')
a('s_mov_b32 exec_hi, 0')
a(f'ds_write_b128 v162, v[156:159] offset:{L_O}')
a(f'ds_write_b32 v160, v2 offset:{F_O}')
stamp(3)
endpgm()

a('L_helpers:')
a('s_cmp_eq_u32 s3, 1')
a('s_cbranch_scc1 L_gwave')
a('s_setprio 3')
a('v_mov_b32 v3, 0')
a('v_lshlrev_b32 v4, 2, v0')
a('ds_write_b32 v4, v3')
a('s_cmp_ge_u32 s2, 192')
a('s_cbranch_scc1 L_h0_nomod')
srd(40, 's28', 's29', 0x300000)
srd(44, 's26', 's27', 1024)
a('''
s_cmp_lt_u32 s2, 64
s_cbranch_scc1 L_h0_p1
s_sub_u32 s58, s2, 64
s_lshr_b32 s59, s58, 5
s_and_b32 s60, s58, 31
s_add_u32 s60, s60, 16
s_branch L_h0_ids
L_h0_p1:
s_lshr_b32 s59, s2, 4
s_and_b32 s60, s2, 15
L_h0_ids:
s_lshl_b32 s61, s59, 8
v_lshl_add_u32 v4, v0, 2, s61
buffer_load_dword v5, v4, s[44:47], 0 offen
v_lshrrev_b32 v6, 3, v0
v_mul_u32_u24 v6, 6144, v6
v_and_b32 v7, 7, v0
v_lshl_add_u32 v6, v7, 4, v6
s_mul_i32 s62, s59, 786432
s_lshl_b32 s63, s60, 7
s_add_u32 s62, s62, s63
''')
for u in range(16):
    a(f's_mov_b32 m0, {T_MOD + u*1024}')
    a(f'buffer_load_dwordx4 v6, s[40:43], s62 offen nt lds')
    if u < 15: a(f's_add_u32 s62, s62, {8*6144}')
a('s_setprio 1')
a('s_waitcnt lgkmcnt(0)')
a('s_barrier')
stamp(0)
make_tag()
a('s_waitcnt vmcnt(16)')
a('v_lshlrev_b32 v8, 16, v5')
a('v_and_b32 v9, 0xffff0000, v5')
a(f's_mov_b32 s63, {LOG2E ^ 0x80000000}')
for r in (8, 9): a(f'v_mul_f32 v{r+2}, s63, v{r}')
for r in (8, 9): a(f'v_exp_f32 v{r+2}, v{r+2}')
for r in (8, 9): a(f'v_add_f32 v{r+2}, 1.0, v{r+2}')
for r in (8, 9): a(f'v_rcp_f32 v{r+4}, v{r+2}')
for r in (8, 9): a(f'v_mul_f32 v{r+6}, v{r}, v{r+4}')
a('v_cvt_pk_bf16_f32 v8, v14, v15')
a('v_lshlrev_b32 v9, 2, v0')
a(f'ds_write_b32 v9, v8 offset:{L_VECA}')
a('v_lshrrev_b32 v10, 4, v0')
a('v_lshlrev_b32 v10, 4, v10')
for ks in range(4): a(f'ds_read_b128 v[{16+4*ks}:{19+4*ks}], v10 offset:{L_VECA + 64*ks}')
tr_addr('v11', 'v12', 7, T_MOD)
a('s_waitcnt vmcnt(0)')
for ks in range(4):
    for nb in range(4): tr_read(32 + 16*ks + 4*nb, 'v11', ks, nb, 128)
a('s_waitcnt lgkmcnt(0)')
for ks in range(4):
    for nb in range(4): mfma(96 + 4*nb, 16 + 4*ks, 32 + 16*ks + 4*nb, ks == 0)
sel_rows('v12', [96, 100, 104, 108])
a('v_mov_b32 v13, v2')
a('''
s_mul_i32 s62, s59, 3072
s_lshl_b32 s63, s60, 6
s_add_u32 s62, s62, s63
s_lshl_b32 s62, s62, 3
''')
a(f's_add_u32 s62, s62, {W_MODP}')
a('v_lshl_add_u32 v14, v0, 3, s62')
a(f'buffer_store_dwordx2 v[12:13], v14, {WS}, 0 offen sc1')
stamp(1)
a('s_branch L_h0_gu')
a('L_h0_nomod:')
a('s_setprio 1')
a('s_waitcnt lgkmcnt(0)')
a('s_barrier')
make_tag()
a('L_h0_gu:')
a('s_and_b32 s58, s88, 1')
a('s_cmp_eq_u32 s58, 1')
a('s_cselect_b32 s44, s22, s20')
a('s_cselect_b32 s45, s23, s21')
a('s_and_b32 s45, s45, 0xffff')
a('s_mov_b32 s46, 1409024')
a('s_mov_b32 s47, 0x20000')
a('''
v_lshrrev_b32 v8, 5, v0
v_mul_u32_u24 v9, 2752, v8
v_and_b32 v7, 31, v0
v_lshl_add_u32 v9, v7, 4, v9
s_lshr_b32 s58, s88, 1
s_mul_i32 s62, s58, 88064
s_lshl_b32 s63, s90, 6
s_add_u32 s62, s62, s63
s_lshl_b32 s63, s89, 2
s_lshl_b32 s64, 1, s63
s_sub_u32 s64, s64, 1
s_mov_b32 s65, s64
s_mov_b64 exec, s[64:65]
''')
for u in range(16):
    a(f's_mov_b32 m0, {T_GU + u*1024}')
    a(f'buffer_load_dwordx4 v9, s[44:47], s62 offen nt lds')
    if u < 15: a(f's_add_u32 s62, s62, {2*2752}')
a('s_mov_b64 exec, -1')
srd(40, 's16', 's17', 0x400000)
srd(52, 's24', 's25', 1409024)
a('''
v_lshrrev_b32 v6, 3, v0
v_lshlrev_b32 v6, 10, v6
v_and_b32 v7, 7, v0
v_lshl_add_u32 v6, v7, 4, v6
v_lshrrev_b32 v8, 4, v0
v_and_b32 v7, 15, v0
v_lshlrev_b32 v10, 10, v8
v_lshl_add_u32 v10, v7, 4, v10
s_waitcnt vmcnt(0)
''')
post_flag(F_GU)
stamp(4)
a('s_lshl_b32 s65, s89, 2')
if DRY:
    for r in (4, 5, 7, 8, 20, 21, 22, 23): a(f'v_mov_b32 v{r}, 0')
    a('s_mov_b64 s[56:57], 0')
    a('s_mov_b64 exec, 0')
    a('s_branch L_gtail')
    a('L_gtail_ret:')
    a('s_mov_b64 s[56:57], -1')
    a('s_mov_b64 exec, -1')
    a('s_waitcnt vmcnt(0)')
stamp(5)
a('''
s_lshl_b32 s62, s4, 17
s_lshl_b32 s63, s5, 7
s_add_u32 s62, s62, s63
''')
spin(lambda: a(f'ds_read_b128 v[12:15], v3 offset:{F_VI}'), ['v12', 'v13', 'v14', 'v15'], 'v2', 'v16', sleep=2)
stamp(2)
for u in range(16):
    a(f's_mov_b32 m0, {T_WO + u*1024}')
    a(f'buffer_load_dwordx4 v6, s[40:43], s62 offen nt lds')
    if u < 15: a(f's_add_u32 s62, s62, {8*1024}')
a('s_cmp_ge_u32 s88, s65')
a('s_cbranch_scc1 L_h0_wo_only')
a('''
s_lshr_b32 s62, s88, 2
s_add_u32 s62, s62, s90
s_lshl_b32 s62, s62, 15
s_and_b32 s63, s88, 3
s_lshl_b32 s63, s63, 8
s_add_u32 s62, s62, s63
''')
if DNLATE:
    a('s_waitcnt vmcnt(0)')
    post_flag(F_WO)
    spin(lambda: a(f'ds_read_b32 v12, v3 offset:{F_V1}'), ['v12'], 'v2', 'v16', sleep=1)
for u in range(8):
    a(f's_mov_b32 m0, {T_D + u*1024}')
    a(f'buffer_load_dwordx4 v10, s[52:55], s62 offen nt lds')
    if u < 7: a(f's_add_u32 s62, s62, {4*1024}')
if not DNLATE:
    a('s_waitcnt vmcnt(8)')
    post_flag(F_WO)
a('s_waitcnt vmcnt(0)')
post_flag(F_DN)
stamp(3)
endpgm()
a('L_h0_wo_only:')
a('s_waitcnt vmcnt(0)')
post_flag(F_WO)
stamp(3)
endpgm()

a('L_gwave:')
a('s_setprio 2')
srd(40, 's8', 's9', 1024)
srd(44, 's14', 's15', 0x400000)
a('''
buffer_load_dwordx4 v[4:7], v1, s[40:43], 0 offen
s_lshl_b32 s58, s5, 7
v_lshl_add_u32 v8, v0, 1, s58
buffer_load_ushort v9, v8, s[40:43], 0 offen
v_lshrrev_b32 v10, 4, v0
v_lshlrev_b32 v10, 13, v10
v_and_b32 v11, 15, v0
v_lshl_add_u32 v10, v11, 4, v10
s_lshl_b32 s62, s5, 19
s_lshl_b32 s63, s4, 8
s_add_u32 s62, s62, s63
''')
def wq_dma():
    for u in range(16):
        a(f's_mov_b32 m0, {T_WQ + u*1024}')
        a(f'buffer_load_dwordx4 v10, s[44:47], s62 offen nt lds')
        if u < 15: a(f's_add_u32 s62, s62, {4*8192}')
if DIAG:
    srd(48, 's32', 's33', 256)
    a('s_waitcnt lgkmcnt(0)')
    a('s_cmp_lg_u32 s2, 0')
    a('s_cbranch_scc1 L_nodiag')
    a('v_mov_b32 v40, 0')
    a(f'buffer_load_dword v41, v40, {WS}, 0 offen offset:0 sc1')
    a(f's_mov_b32 s63, {W_MODP}')
    a(f'buffer_load_dword v42, v40, {WS}, s63 offen offset:4 sc1')
    a(f's_mov_b32 s63, {W_XT}')
    a(f'buffer_load_dword v43, v40, {WS}, s63 offen offset:12 sc1')
    a(f's_mov_b32 s63, {W_YP}')
    a(f'buffer_load_dword v44, v40, {WS}, s63 offen offset:4092 sc1')
    a(f's_mov_b32 s63, {W_MB + 8192}')
    a(f'buffer_load_dword v45, v40, {WS}, s63 offen sc1')
    a('v_mov_b32 v46, s6')
    a('s_waitcnt vmcnt(0)')
    a('s_mov_b64 exec, 1')
    for i, r in enumerate((46, 41, 42, 43, 44, 45)):
        a(f'buffer_store_dword v{r}, v40, s[48:51], 0 offen offset:{4*i}')
    a('s_mov_b64 exec, -1')
    a('L_nodiag:')
if not WQLATE: wq_dma()
a('s_barrier')
make_tag()
a('s_getreg_b32 s91, hwreg(HW_REG_XCC_ID)')
a(f's_waitcnt vmcnt({0 if WQLATE else 16})')
if WQLATE: wq_dma()
stamp(0)
srd(44, 's30', 's31', 1024)

def ln_finish(mean, var):
    rne(var)
    a(f'v_add_f32 {var}, 0x3727c5ac, {var}')
    rne(var)
    a(f'v_sqrt_f32 {var}, {var}')
    rne(var)
    rne(mean)

def ln_apply(x, mean, den, rden, t):
    a(f'v_sub_f32 {x}, {x}, {mean}')
    rne(x)
    a(f'v_mul_f32 {t}, {x}, {rden}')
    a(f'v_fma_f32 {x}, -{t}, {den}, {x}')
    a(f'v_fma_f32 {x}, {x}, {rden}, {t}')
    rne(x)

for i in range(4):
    a(f'v_lshlrev_b32 v{12+2*i}, 16, v{4+i}')
    a(f'v_and_b32 v{13+2*i}, 0xffff0000, v{4+i}')
vals = [f'v{12+i}' for i in range(8)]
a(f'v_add_f32 v22, {vals[0]}, {vals[1]}')
for v in vals[2:]: a(f'v_add_f32 v22, v22, {v}')
xlane('v_add_f32', 'v22', 'v23', FULL)
a('v_mul_f32 v20, 0x3b000000, v22')
a(f'v_sub_f32 v23, {vals[0]}, v20')
a('v_mul_f32 v22, v23, v23')
for v in vals[1:]:
    a(f'v_sub_f32 v23, {v}, v20')
    a('v_fmac_f32 v22, v23, v23')
xlane('v_add_f32', 'v22', 'v23', FULL)
a('v_mul_f32 v21, 0x3b000000, v22')
ln_finish('v20', 'v21')
a('v_rcp_f32 v22, v21')
a('v_lshlrev_b32 v9, 16, v9')
ln_apply('v9', 'v20', 'v21', 'v22', 'v23')
a('s_lshl_b32 s58, s5, 9')
a(f's_add_u32 s58, s58, {W_MODP}')
a('v_lshl_add_u32 v24, v0, 3, s58')
tr_addr('v30', 'v25', 8, T_WQ)
a('v_lshrrev_b32 v26, 4, v0')
a('v_lshlrev_b32 v26, 4, v26')
a('s_lshl_b32 s58, s7, 8')
a(f's_add_u32 s58, s58, {W_XT}')
a('v_and_b32 v31, 31, v0')
a('v_lshl_add_u32 v31, v31, 3, s58')
a('s_waitcnt vmcnt(0)')
for ks in range(2):
    for nb in range(8): tr_read(36 + 32*ks + 4*nb, 'v30', ks, nb, 256)
stamp(1)
def g_issue_mod():
    for rb in range(4):
        for m in range(2):
            off = (rb*3072 + m*512) * 8
            r = 104 + 2*(2*rb + m)
            a(f's_mov_b32 s62, {off}')
            a(f'buffer_load_dwordx2 v[{r}:{r+1}], v24, {WS}, s62 offen sc1')
    a(f'buffer_load_dwordx2 v[120:121], v31, {WS}, 0 offen sc1')
poll(g_issue_mod, lambda: tagcheck([f'v{105+2*i}' for i in range(9)], 'v2', 'v25'), sleep=PSLEEP, cidx=4)
a('v_cmp_ne_u32 vcc, s91, v120')
a('s_cmp_eq_u64 vcc, 0')
a(f's_cselect_b32 s69, {DL if LOCAL else 0}, 0')
a(f'v_add_u32 v31, {W_XB}, v1')
def g_issue_xb():
    a(f'buffer_load_dwordx4 v[120:123], v31, {WS}, 0 offen sc1')
    a(f'buffer_load_dwordx4 v[124:127], v31, {WS}, 0 offen offset:1024 sc1')
XBCHK = lambda: tagcheck(['v121', 'v123', 'v125', 'v127'], 'v2', 'v25')
a('s_cmp_lg_u32 s69, 0')
a('s_cbranch_scc1 L_g_islocal')
poll(g_issue_xb, XBCHK, sleep=PSLEEP)
a('L_g_islocal:')
if DIAG:
    a('s_cmp_lg_u32 s2, 0')
    a('s_cbranch_scc1 L_nodiag2')
    a('v_mov_b32 v140, 0\nv_mov_b32 v141, s69\nv_mov_b32 v142, v2\nv_mov_b32 v143, s68')
    a('s_mov_b64 exec, 1')
    a('buffer_store_dword v141, v140, s[48:51], 0 offen offset:24')
    a('buffer_store_dword v142, v140, s[48:51], 0 offen offset:28')
    a('buffer_store_dword v143, v140, s[48:51], 0 offen offset:32')
    a('s_mov_b64 exec, -1')
    a('L_nodiag2:')
stamp(2)
a('v_add_f32 v104, v104, v108\nv_add_f32 v106, v106, v110\nv_add_f32 v112, v112, v116\nv_add_f32 v114, v114, v118')
a('v_add_f32 v32, v104, v112\nv_add_f32 v34, v106, v114')
rne_many(['v32', 'v34'])
a('v_add_f32 v34, 1.0, v34'); rne('v34')
a('v_mul_f32 v9, v9, v34'); rne('v9')
a('v_add_f32 v9, v9, v32')
a('v_cvt_pk_bf16_f32 v9, v9, v9')
a('v_lshlrev_b32 v25, 1, v0')
a(f'ds_write_b16 v25, v9 offset:{L_VECH}')
for ks in range(2): a(f'ds_read_b128 v[{28+4*ks}:{31+4*ks}], v26 offset:{L_VECH + 64*ks}')
a('s_waitcnt lgkmcnt(0)')
for ks in range(2):
    for nb in range(8): mfma(100 + 4*nb, 28 + 4*ks, 36 + 32*ks + 4*nb, ks == 0)
sel_rows('v132', [100, 104, 108, 112])
sel_rows('v133', [116, 120, 124, 128])
sanitize(['v132', 'v133'])
a(f's_add_u32 s59, s74, {MB_QP}')
a('v_lshl_add_u32 v25, v0, 2, s59')
store2('v132', 'v25', 'dword')
store2('v133', 'v25', 'dword', off=256)
stamp(3)
a('s_lshr_b32 s58, s88, 1')
a('s_lshl_b32 s59, s58, 8')
a(f's_add_u32 s59, s59, {W_MODP + 1024*8}')
a('v_bfe_u32 v24, v0, 3, 2')
a(f'v_mul_u32_u24 v24, {3072*8}, v24')
a('v_and_b32 v25, 7, v0')
a('v_lshl_add_u32 v24, v25, 5, v24')
a('v_add_u32 v24, s59, v24')
a('s_lshl_b32 s59, s58, 6')
a('v_lshl_add_u32 v31, v25, 3, s59')
a('buffer_load_dwordx2 v[96:97], v31, s[40:43], 0 offen')
a('s_and_b32 s58, s88, 3')
a('s_lshl_b32 s59, s7, 2')
a('s_add_u32 s58, s58, s59')
a('s_lshl_b32 s59, s58, 7')
a(f's_add_u32 s59, s59, {W_MODP + 1024*8}')
a('v_bfe_u32 v28, v0, 2, 2')
a(f'v_mul_u32_u24 v28, {3072*8}, v28')
a('v_and_b32 v29, 3, v0')
a('v_lshl_add_u32 v28, v29, 5, v28')
a('v_add_u32 v28, s59, v28')
a('s_lshl_b32 s59, s58, 5')
a('v_lshl_add_u32 v23, v29, 3, s59')
a('buffer_load_dwordx2 v[98:99], v23, s[40:43], 0 offen')
def g_issue_e():
    for vi in range(3):
        a(f's_mov_b32 s62, {vi*512*8}')
        a(f'buffer_load_dwordx4 v[{32+8*vi}:{35+8*vi}], v24, {WS}, s62 offen sc1')
        a(f'buffer_load_dwordx4 v[{36+8*vi}:{39+8*vi}], v24, {WS}, s62 offen offset:16 sc1')
    for vi in range(2):
        a(f's_mov_b32 s62, {vi*1536*8}')
        a(f'buffer_load_dwordx4 v[{56+8*vi}:{59+8*vi}], v28, {WS}, s62 offen sc1')
        a(f'buffer_load_dwordx4 v[{60+8*vi}:{63+8*vi}], v28, {WS}, s62 offen offset:16 sc1')
poll(g_issue_e, lambda: tagcheck([f'v{33+2*i}' for i in range(20)], 'v2', 'v25'), sleep=PSLEEP)
E1 = [f'v{32+2*i}' for i in range(12)]
xlane_many('v_add_f32', E1, [f'v{72+i}' for i in range(12)], ['ror8', 'r16'])
E2 = [f'v{56+2*i}' for i in range(8)]
xlane_many('v_add_f32', E2, [], ['ror4', 'ror8'])
rne_many(E1 + E2)
for e in range(4): a(f'v_mov_b32 v{100+e}, v{32+2*e}')
for e in range(4): a(f'v_add_f32 v{104+e}, 1.0, v{48+2*e}')
rne_many(rng(104, 4))
a('v_cvt_pk_bf16_f32 v72, v104, v105\nv_cvt_pk_bf16_f32 v73, v106, v107')
a('v_cvt_pk_bf16_f32 v74, v40, v42\nv_cvt_pk_bf16_f32 v75, v44, v46')
a('v_and_b32 v21, 7, v0')
a('v_lshlrev_b32 v21, 3, v21')
a(f'ds_write_b64 v21, v[72:73] offset:{L_VECBC}')
a(f'ds_write_b64 v21, v[74:75] offset:{L_VECBC + 64}')
post_flag(F_BC)
a('v_lshlrev_b32 v108, 16, v96\nv_and_b32 v109, 0xffff0000, v96\nv_lshlrev_b32 v110, 16, v97\nv_and_b32 v111, 0xffff0000, v97')
for e in range(4): a(f'v_mov_b32 v{112+e}, v{56+2*e}')
for e in range(4): a(f'v_mov_b32 v{116+e}, v{64+2*e}')
a('v_lshlrev_b32 v120, 16, v98\nv_and_b32 v121, 0xffff0000, v98\nv_lshlrev_b32 v122, 16, v99\nv_and_b32 v123, 0xffff0000, v99')
stamp(5)
a('s_and_b32 s58, s75, 0xf8')
a('s_lshl_b32 s58, s58, 12')
a(f's_add_u32 s58, s58, {W_MB}')
a('s_add_u32 s58, s58, s69')
a('v_lshrrev_b32 v24, 5, v0')
a('v_lshlrev_b32 v24, 12, v24')
a('v_and_b32 v25, 31, v0')
a('v_lshl_add_u32 v24, v25, 4, v24')
a('v_add_u32 v6, s58, v24')
def g_issue4(vaddr, off, base):
    def f():
        for u in range(4):
            a(f's_mov_b32 s62, {u*2*MBP}')
            a(f'buffer_load_dwordx4 v[{base+4*u}:{base+4*u+3}], {vaddr}, {WS}, s62 offen offset:{off} sc1')
    return f
poll(g_issue4('v6', MB_QP, 32), SC(rng(32, 16)), sleep=PSLEEP, cidx=2)
sum4(32, 4)
xlane_many('v_add_f32', rng(32, 4), rng(36, 4), ['r32'])
a('v_cvt_pk_bf16_f32 v32, v32, v33\nv_cvt_pk_bf16_f32 v33, v34, v35')
a('v_and_b32 v7, 31, v0')
a('v_lshlrev_b32 v7, 3, v7')
a(f'ds_write_b64 v7, v[32:33] offset:{L_Q}')
post_flag(F_Q)
stamp(4)
def g_issue_ml():
    a(f'ds_read_b128 v[32:35], v3 offset:{F_P}')
    a(f'ds_read_b128 v[36:39], v3 offset:{L_ML}')
    a(f'ds_read_b128 v[40:43], v3 offset:{L_ML + 16}')
spin(g_issue_ml, ['v32', 'v33', 'v34', 'v35'], 'v2', 'v25', sleep=1)
a('v_max3_f32 v44, v36, v37, v38')
a('v_max_f32 v44, v44, v39')
a(f's_mov_b32 s63, {LOG2E}')
for i in range(4): a(f'v_sub_f32 v{36+i}, v{36+i}, v44')
for i in range(4): a(f'v_mul_f32 v{36+i}, s63, v{36+i}')
for i in range(4): a(f'v_exp_f32 v{36+i}, v{36+i}')
a('v_mul_f32 v45, v36, v40')
for i in range(1, 4): a(f'v_fmac_f32 v45, v{36+i}, v{40+i}')
a('v_mov_b32 v16, v36\nv_mov_b32 v17, v37\nv_mov_b32 v18, v38\nv_mov_b32 v19, v39')
sanitize(['v44', 'v45'])
a(f's_add_u32 s59, s74, {MB_ML}')
a('v_mov_b32 v24, s59')
a('s_mov_b64 exec, 1')
store2('v[44:45]', 'v24', 'dwordx2')
a('s_mov_b64 exec, -1')
a(f's_add_u32 s59, s58, {MB_ML}')
a('v_and_b32 v25, 7, v0')
a('v_lshl_add_u32 v24, v25, 12, s59')
a(f'v_add_u32 v31, {W_XB}, v1')
def g_issue_mlg():
    a(f'buffer_load_dwordx2 v[32:33], v24, {WS}, 0 offen sc1')
    a(f'buffer_load_dwordx4 v[40:43], v31, {WS}, 0 offen sc1')
    a(f'buffer_load_dwordx4 v[44:47], v31, {WS}, 0 offen offset:1024 sc1')
def g_check_mlg():
    a('v_max_u32 v27, v32, v33')
    a('v_cmp_eq_u32 s[60:61], -1, v27')
    tagcheck(['v41', 'v43', 'v45', 'v47'], 'v2', 'v25')
    a('s_or_b64 s[60:61], vcc, s[60:61]')
poll(g_issue_mlg, g_check_mlg, sleep=PSLEEP, scc=True)
a('v_mov_b32 v36, v32')
xlane('v_max_f32', 'v36', 'v25', ['x1', 'x2', 'hm'])
a('v_sub_f32 v32, v32, v36')
a('v_mul_f32 v32, s63, v32')
a('v_exp_f32 v32, v32')
a('v_mul_f32 v36, v32, v33')
xlane('v_add_f32', 'v36', 'v25', ['x1', 'x2', 'hm'])
a('v_rcp_f32 v37, v36')
a('v_fma_f32 v38, -v36, v37, 1.0')
a('v_fma_f32 v37, v38, v37, v37')
a('v_mul_f32 v32, v32, v37')
for s in range(8): a(f'v_readlane_b32 s{80+s}, v32, {s}')
a('s_mov_b32 vcc_lo, 0')
a('s_mov_b32 vcc_hi, -1')
for u in range(4):
    a(f'v_mov_b32 v{12+u}, s{80+2*u}')
    a(f'v_mov_b32 v25, s{81+2*u}')
    a(f'v_cndmask_b32 v{12+u}, v{12+u}, v25, vcc')
a('v_and_b32 v4, 31, v0')
a('v_lshlrev_b32 v4, 4, v4')
a(f's_add_u32 s59, s74, {MB_OP}')
a('v_add_u32 v5, s59, v4')
a('s_lshr_b32 s60, s88, 1')
a('s_lshl_b32 s59, s60, 7')
a(f's_add_u32 s59, s59, {W_YP}')
a('v_lshrrev_b32 v24, 3, v0')
a('v_lshlrev_b32 v8, 11, v24')
a('v_and_b32 v25, 7, v0')
a('v_lshl_add_u32 v8, v25, 4, v8')
a('v_add_u32 v8, s59, v8')
a(f's_add_u32 s59, s74, {MB_ST}')
a('v_mov_b32 v9, s59')
stamp(6)
a('s_lshl_b32 s65, s89, 2')
a('s_cmp_ge_u32 s88, s65')
a('s_cbranch_scc1 L_g_notdn')
a('s_and_b32 s58, s75, 0xe0')
a('s_lshl_b32 s58, s58, 12')
a(f's_add_u32 s58, s58, {W_MB}')
a('s_add_u32 s58, s58, s69')
a('s_lshr_b32 s59, s88, 2')
a('s_lshl_b32 s59, s59, 7')
a('s_add_u32 s59, s59, s58')
a('v_lshlrev_b32 v20, 12, v24')
a('v_lshl_add_u32 v20, v25, 4, v20')
a('v_add_u32 v20, s59, v20')
a('v_and_b32 v22, 15, v0')
a('v_lshlrev_b32 v22, 13, v22')
a(f's_add_u32 s59, s58, {MB_ST}')
a('v_add_u32 v22, s59, v22')
def g_issue_bc():
    for vec in range(2):
        for u in range(4):
            a(f's_mov_b32 s62, {8*u*MBP}')
            r = 32 + 16*vec + 4*u
            a(f'buffer_load_dwordx4 v[{r}:{r+3}], v20, {WS}, s62 offen offset:{MB_BC + 768*vec} sc1')
poll(g_issue_bc, SC(rng(32, 32)), sleep=PSLEEP, cidx=1)
sum4(32, 4); sum4(48, 4)
BCv = rng(32, 4) + rng(48, 4)
xlane_many('v_add_f32', BCv, rng(64, 8), ['r16', 'r32'])
for e in range(4):
    a(f'v_mov_b32_dpp v{64+e}, v{32+e} row_ror:8 row_mask:0xf bank_mask:0xf')
    a(f'v_mov_b32_dpp v{68+e}, v{48+e} row_ror:8 row_mask:0xf bank_mask:0xf')
a('v_and_b32 v25, 8, v0')
a('v_cmp_eq_u32 vcc, 0, v25')
for e in range(4):
    a(f'v_cndmask_b32 v{72+e}, v{64+e}, v{32+e}, vcc')
    a(f'v_cndmask_b32 v{76+e}, v{68+e}, v{48+e}, vcc')
    a(f'v_cndmask_b32 v{80+e}, v{32+e}, v{64+e}, vcc')
    a(f'v_cndmask_b32 v{84+e}, v{48+e}, v{68+e}, vcc')
a('s_branch L_g_const_done')
a('L_g_notdn:')
a('s_and_b32 s58, s88, 3')
a('s_lshl_b32 s59, s7, 2')
a('s_add_u32 s58, s58, s59')
a('s_lshl_b32 s59, s58, 6')
a('v_and_b32 v25, 3, v0')
a('v_lshl_add_u32 v22, v25, 4, s59')
a('v_lshrrev_b32 v24, 2, v0')
a('v_lshl_add_u32 v22, v24, 11, v22')
a(f'v_add_u32 v20, {W_ZP}, v22')
a(f'v_add_u32 v22, {W_YP}, v22')
a('L_g_const_done:')
a('s_mov_b32 s76, -1')
a('s_mov_b32 s77, 0')
a('s_mov_b32 s78, -1')
a('s_mov_b32 s79, 0xfff')
stamp(13)
a('s_setprio 3')
a('L_gtail:')
def g_issue_o():
    a(f'ds_read_b128 v[32:35], v3 offset:{F_O}')
    for w in range(4): a(f'ds_read_b128 v[{36+4*w}:{39+4*w}], v4 offset:{L_O + 512*w}')
spin(g_issue_o, ['v32', 'v33', 'v34', 'v35'], 'v2', 'v25')
for e in range(4): a(f'v_mul_f32 v{52+e}, v16, v{36+e}')
for w in range(1, 4):
    for e in range(4): a(f'v_fmac_f32 v{52+e}, v{16+w}, v{36+4*w+e}')
sanitize(rng(52, 4))
a(f's_and_b64 exec, {BE}, s[76:77]')
store2('v[52:55]', 'v5', 'dwordx4')
a(f's_mov_b64 exec, {BE}')
stamp(7)
poll(g_issue4('v6', MB_OP, 32), SC(rng(32, 16)), dry_skip=True, cidx=5)
for e in range(4): a(f'v_mul_f32 v{48+e}, v12, v{32+e}')
for e in range(4): a(f'v_mul_f32 v{52+e}, v13, v{36+e}')
for e in range(4): a(f'v_fmac_f32 v{48+e}, v14, v{40+e}')
for e in range(4): a(f'v_fmac_f32 v{52+e}, v15, v{44+e}')
for e in range(4): a(f'v_add_f32 v{48+e}, v{48+e}, v{52+e}')
xlane_many('v_add_f32', rng(48, 4), rng(52, 4), ['r32'])
a('v_cvt_pk_bf16_f32 v48, v48, v49\nv_cvt_pk_bf16_f32 v49, v50, v51')
a(f'ds_write_b64 v7, v[48:49] offset:{L_VEC1}')
post_flag(F_V1)
stamp(8)
def g_issue_y():
    for u in range(4):
        a(f's_mov_b32 s62, {u*8*2048}')
        a(f'buffer_load_dwordx4 v[{32+4*u}:{35+4*u}], v8, {WS}, s62 offen sc1')
poll(g_issue_y, SC(rng(32, 16)), dry_skip=True, cidx=3)
stamp(9)
sum4(32, 4)
xlane_many('v_add_f32', rng(32, 4), rng(36, 4), ['ror8', 'r16', 'r32'])
X = rng(32, 4)
rne_many(X)
for e in range(4): a(f'v_mul_f32 v{32+e}, v{32+e}, v{100+e}')
rne_many(X)
for e in range(4): a(f'v_add_f32 v{32+e}, v{32+e}, v{108+e}')
rne_many(X)
for e in range(4): a(f'v_mul_f32 v{36+e}, v{32+e}, v{104+e}')
a('v_cvt_pk_bf16_f32 v40, v36, v37\nv_cvt_pk_bf16_f32 v41, v38, v39')
a(f'ds_write_b64 v21, v[40:41] offset:{L_VEC2}')
a('v_lshlrev_b32 v44, 16, v40\nv_and_b32 v45, 0xffff0000, v40\nv_lshlrev_b32 v46, 16, v41\nv_and_b32 v47, 0xffff0000, v41')
for e in range(4): a(f'v_sub_f32 v{36+e}, v{36+e}, v{44+e}')
a('v_cvt_pk_bf16_f32 v42, v36, v37\nv_cvt_pk_bf16_f32 v43, v38, v39')
a(f'ds_write_b64 v21, v[42:43] offset:{L_VEC2 + 64}')
post_flag(F_V2)
stamp(10)
a('v_add_f32 v44, v32, v33\nv_add_f32 v45, v34, v35')
a('v_add_f32 v44, v44, v45')
xlane('v_add_f32', 'v44', 'v25', ['x1', 'x2', 'hm'])
a('v_mul_f32 v44, 0x3d000000, v44')
for e in range(4): a(f'v_sub_f32 v{36+e}, v{32+e}, v44')
a('v_mul_f32 v45, v36, v36')
for e in range(1, 4): a(f'v_fmac_f32 v45, v{36+e}, v{36+e}')
xlane('v_add_f32', 'v45', 'v25', ['x1', 'x2', 'hm'])
sanitize(['v44', 'v45'])
a(f's_and_b64 exec, {BE}, 1')
store2('v[44:45]', 'v9', 'dwordx2')
a(f's_mov_b64 exec, {BE}')
a('s_cmp_ge_u32 s88, s65')
a('s_cbranch_scc1 L_g_fin')
def g_issue_gp():
    for u in range(4):
        a(f's_mov_b32 s62, {8*u*MBP}')
        a(f'buffer_load_dwordx4 v[{32+4*u}:{35+4*u}], v20, {WS}, s62 offen offset:{MB_GP} sc1')
    a(f'buffer_load_dwordx2 v[48:49], v22, {WS}, 0 offen sc1')
poll(g_issue_gp, SC(rng(32, 18)), dry_skip=True, cidx=0)
stamp(11)
a('v_mov_b32 v50, v48')
sum4(32, 4)
xlane('v_add_f32', 'v50', 'v25', ['x1', 'x2', 'hm', 'm'])
a('v_mul_f32 v50, 0x3d800000, v50')
a('v_sub_f32 v48, v48, v50')
a('v_mul_f32 v48, v48, v48')
a('s_mov_b32 s63, 0x42000000')
a('v_fma_f32 v49, v48, s63, v49')
xlane_many('v_add_f32', rng(32, 4), rng(36, 4), ['r16', 'r32'])
xlane('v_add_f32', 'v49', 'v25', ['x1', 'x2', 'hm', 'm'])
a('v_mul_f32 v49, 0x3b000000, v49')
for e in range(4): a(f'v_mov_b32_dpp v{36+e}, v{32+e} row_ror:8 row_mask:0xf bank_mask:0xf')
ln_finish('v50', 'v49')
a('v_rcp_f32 v51, v49')
a('v_and_b32 v25, 8, v0')
a('v_cmp_eq_u32 vcc, 0, v25')
a('v_fma_f32 v52, -v49, v51, 1.0')
a('v_fma_f32 v51, v52, v51, v51')
for e in range(4):
    a(f'v_cndmask_b32 v{40+e}, v{36+e}, v{32+e}, vcc')
    a(f'v_cndmask_b32 v{44+e}, v{32+e}, v{36+e}, vcc')
for e in range(4):
    a(f'v_fma_f32 v{40+e}, -v50, v{72+e}, v{40+e}')
    a(f'v_fma_f32 v{44+e}, -v50, v{80+e}, v{44+e}')
for e in range(4):
    a(f'v_fma_f32 v{40+e}, v{40+e}, v51, v{76+e}')
    a(f'v_fma_f32 v{44+e}, v{44+e}, v51, v{84+e}')
rne_many(rng(40, 8))
a('s_mov_b32 s63, 0x3d372713')
a('s_mov_b32 s64, 0xc0135761')
G2 = [(f'v{40+e}', f'v{32+e}') for e in range(4)]
for g, t in G2: a(f'v_mul_f32 {t}, {g}, {g}')
for g, t in G2: a(f'v_mul_f32 {t}, {t}, {g}')
for g, t in G2: a(f'v_fma_f32 {t}, {t}, s63, {g}')
for g, t in G2: a(f'v_mul_f32 {t}, s64, {t}')
for g, t in G2: a(f'v_exp_f32 {t}, {t}')
for g, t in G2: a(f'v_add_f32 {t}, 1.0, {t}')
for g, t in G2: a(f'v_rcp_f32 {t}, {t}')
for g, t in G2: a(f'v_mul_f32 {g}, {g}, {t}')
rne_many(rng(40, 4))
for e in range(4): a(f'v_mul_f32 v{40+e}, v{40+e}, v{44+e}')
a('v_cvt_pk_bf16_f32 v40, v40, v41\nv_cvt_pk_bf16_f32 v41, v42, v43')
a(f'ds_write_b64 v21, v[40:41] offset:{L_VEC3}')
post_flag(F_V3)
stamp(12)
a('s_branch L_gtail_end')
a('L_g_fin:')
a('s_cmp_lt_u32 s88, 24')
a('s_cbranch_scc1 L_gtail_end')
a('s_cmp_ge_u32 s88, 28')
a('s_cbranch_scc1 L_gtail_end')
def g_issue_y2():
    for u in range(2):
        a(f's_mov_b32 s62, {u*16*2048}')
        a(f'buffer_load_dwordx4 v[{32+4*u}:{35+4*u}], v22, {WS}, s62 offen sc1')
poll(g_issue_y2, SC(rng(32, 8)), dry_skip=True)
sum4(32, 2)
xlane_many('v_add_f32', rng(32, 4), rng(36, 4), ['ror4', 'ror8', 'r16', 'r32'])
rne_many(X)
for e in range(4): a(f'v_mul_f32 v{32+e}, v{32+e}, v{112+e}')
rne_many(X)
for e in range(4): a(f'v_add_f32 v{28+e}, v{32+e}, v{120+e}')
rne_many(rng(28, 4))
a('v_mov_b32 v40, 0\nv_mov_b32 v41, 0\nv_mov_b32 v42, 0\nv_mov_b32 v43, 0')
def g_issue_z():
    for u in range(2):
        a(f's_mov_b32 s62, {u*16*2048}')
        a(f'buffer_load_dwordx4 v[{32+4*u}:{35+4*u}], v20, {WS}, s62 offen sc1')
    a(f's_mov_b32 s62, {2*16*2048}')
    a(f's_and_b64 exec, {BE}, s[78:79]')
    a(f'buffer_load_dwordx4 v[40:43], v20, {WS}, s62 offen sc1')
    a(f's_mov_b64 exec, {BE}')
poll(g_issue_z, SC(rng(32, 12)), dry_skip=True)
stamp(11)
sum4(32, 3)
xlane_many('v_add_f32', rng(32, 4), rng(36, 4), ['ror4', 'ror8', 'r16', 'r32'])
rne_many(X)
for e in range(4): a(f'v_mul_f32 v{32+e}, v{32+e}, v{116+e}')
rne_many(X)
for e in range(4): a(f'v_add_f32 v{32+e}, v{32+e}, v{28+e}')
a('v_cvt_pk_bf16_f32 v32, v32, v33\nv_cvt_pk_bf16_f32 v33, v34, v35')
a(f's_and_b64 exec, {BE}, 0xf')
a('buffer_store_dwordx2 v[32:33], v23, s[44:47], 0 offen')
a(f's_mov_b64 exec, {BE}')
a('s_cmp_lg_u32 s2, 192')
a('s_cbranch_scc1 L_g_noepoch')
a(f's_and_b64 exec, {BE}, 1')
a(f'buffer_store_dword v2, v3, {WS}, 0 offen sc1')
a(f's_mov_b64 exec, {BE}')
a('L_g_noepoch:')
stamp(12)
a('L_gtail_end:')
if DRY:
    a('s_cbranch_execz L_gtail_ret')
endpgm()
a('L_end:')
a('s_endpgm')

a.finalize()
open(OUTF, 'w').write(wrap(a.text(), 256, 640, LDS_SIZE, 168, nsgpr=100))
print('instructions:', len(a.ins), 'nops:', sum(1 for i in a.ins if i.kind == 'nop'))
```
